```python
import torch

def _softmax(x, axis=-1):
    return torch.softmax(x, dim=axis)
def _gelu(x):
    return torch.nn.functional.gelu(x, approximate="tanh")
def _silu(x):
    return torch.nn.functional.silu(x)
def _sigmoid(x):
    return torch.sigmoid(x)
def _layernorm(x, axis=-1, eps=1e-5):
    m = x.mean(dim=axis, keepdim=True)
    v = x.var(dim=axis, keepdim=True, unbiased=False)
    return (x - m) / torch.sqrt(v + eps)
def _scatter_add(tgt, idx, src, axis=0):
    return tgt.clone().index_add_(axis, idx, src)
def _segment_sum(src, seg, n):
    out = torch.zeros((n,) + src.shape[1:], dtype=src.dtype)
    return out.index_add_(0, seg, src)
def _pad(x, pw):
    flat = tuple(v for pair in reversed(pw) for v in pair)
    return torch.nn.functional.pad(x, flat)

kernel_name = 'recurrent_scan__gqa_block_cached__mixer_token_mlp__decode'

def setup_inputs():

    _w = (lambda a: (lambda t: t.to(torch.bfloat16) if t.is_floating_point() else t)(torch.as_tensor(a)))
    def _A_setup():
        B, Sq, D = 4, 1, 576
        Hq, Hkv, Sk, Dh = 32, 16, 8192, 128
        assert Hq % Hkv == 0, (Hq, Hkv)
        return {
            "x": _w((lambda *s: torch.randn(*s, dtype=torch.bfloat16) * 0.05)(B, Sq, D)),
            "k_cache": _w((lambda *s: torch.randn(*s, dtype=torch.bfloat16) * 1.6)(B, Hkv, Sk, Dh)),
            "v_cache": _w((lambda *s: torch.randn(*s, dtype=torch.bfloat16) * 1.6)(B, Hkv, Sk, Dh)),
            "wq": _w((lambda *s: torch.randn(*s, dtype=torch.bfloat16) * 1.6)(D, Hq * Dh) * (D ** -0.5)),
            "wo": _w((lambda *s: torch.randn(*s, dtype=torch.bfloat16) * 1.6)(Hq * Dh, D) * ((Hq * Dh) ** -0.5)),
        }
    _A_in = _A_setup()

    def _B_setup():
        B, S, D, F = 4, 1, 576, 4608
        return {
            "x": _w((lambda *s: torch.randn(*s, dtype=torch.bfloat16) * 0.05)(B, S, D)),
            "w1": _w((lambda *s: torch.randn(*s, dtype=torch.bfloat16) * 0.2)(S, F) * (S ** -0.5)),
            "b1": _w((lambda *s: torch.randn(*s, dtype=torch.bfloat16) * 0.2)(F) * 0.02),
            "w2": _w((lambda *s: torch.randn(*s, dtype=torch.bfloat16) * 0.2)(F, S) * (F ** -0.5)),
            "b2": _w((lambda *s: torch.randn(*s, dtype=torch.bfloat16) * 0.2)(S) * 0.02),
        }
    _B_in = _B_setup()

    return {
        "A_x": _A_in["x"],
        "A_k_cache": _A_in["k_cache"],
        "A_v_cache": _A_in["v_cache"],
        "A_wq": _A_in["wq"],
        "A_wo": _A_in["wo"],
        "B_x": _B_in["x"],
        "B_w1": _B_in["w1"],
        "B_b1": _B_in["b1"],
        "B_w2": _B_in["w2"],
        "B_b2": _B_in["b2"],
    }

def reference(A_x, A_k_cache, A_v_cache, A_wq, A_wo, B_x, B_w1, B_b1, B_w2, B_b2):
    def _A_ref(x, k_cache, v_cache, wq, wo):
        B, Sq, D = x.shape
        Hq, Dh = 32, 128
        Hkv = k_cache.shape[1]
        rep = Hq // Hkv
        q = (lambda x, *d: x.permute(*d))((x @ wq).reshape(B, Sq, Hq, Dh), 0, 2, 1, 3)
        k = (lambda x, n, axis: torch.repeat_interleave(x, n, dim=axis))(k_cache, rep, axis=1)
        v = (lambda x, n, axis: torch.repeat_interleave(x, n, dim=axis))(v_cache, rep, axis=1)
        scores = torch.einsum("bhqd,bhkd->bhqk", q, k) * (Dh ** -0.5)
        p = _softmax(scores, axis=-1)
        o = torch.einsum("bhqk,bhkd->bhqd", p, v)
        return (lambda x, *d: x.permute(*d))(o, 0, 2, 1, 3).reshape(B, Sq, Hq * Dh) @ wo

    def _B_ref(x, w1, b1, w2, b2):
        B, S, D = x.shape
        h = _layernorm(x, axis=-1)
        u = torch.einsum("bsd,sf->bdf", h, w1) + b1
        u = _gelu(u)
        y = torch.einsum("bdf,fs->bds", u, w2) + b2
        return (lambda x, *d: x.permute(*d))(y, 0, 2, 1)

    x = A_x
    xn = _layernorm(x, axis=-1)
    s = _A_ref(xn, A_k_cache, A_v_cache, A_wq, A_wo)
    g = _silu(_B_ref(xn, B_w1, B_b1, B_w2, B_b2))
    return x + s * g
```

```python
import re

TRANS = ("v_exp_f32", "v_rcp_f32", "v_rsq_f32", "v_sqrt_f32", "v_log_f32", "v_sin_f32", "v_cos_f32")


def _split_ops(s):
    out, depth, cur = [], 0, ""
    for ch in s:
        if ch in "[(":
            depth += 1
        if ch in "])":
            depth -= 1
        if ch == "," and depth == 0:
            out.append(cur.strip())
            cur = ""
        else:
            cur += ch
    if cur.strip():
        out.append(cur.strip())
    return out


_R = re.compile(r"^-?\|?(?:abs\()?([vsa])(\d+)\)?\|?$")
_RR = re.compile(r"^-?([vsa])\[(\d+):(\d+)\]$")


def regs_of(tok):
    tok = tok.strip()
    m = _R.match(tok)
    if m:
        return {m.group(1) + m.group(2)}
    m = _RR.match(tok)
    if m:
        return {m.group(1) + str(i) for i in range(int(m.group(2)), int(m.group(3)) + 1)}
    if tok in ("vcc", "exec", "m0"):
        return {tok}
    return set()


class Asm:
    def __init__(self):
        self.lines = []
        self.pos = 0
        self.hist = []
        self.vm = []
        self.nlabel = 0

    def raw(self, text):
        self.lines.append(text)

    def comment(self, text):
        self.lines.append("  ; " + text)

    def label(self, name):
        self.lines.append(name + ":")
        self._nop(8)

    def newlabel(self, base="L"):
        self.nlabel += 1
        return f"{base}_{self.nlabel}"

    def _nop(self, states):
        while states > 0:
            n = min(states, 16)
            self.lines.append(f"  s_nop {n-1}")
            self.pos += n
            states -= n

    def __call__(self, text):
        text = text.strip()
        mn, _, rest = text.partition(" ")
        ops = _split_ops(rest)
        clean = []
        for o in ops:
            parts = o.split()
            clean.append(parts[0] if parts else "")
        kind = None
        writes, reads = set(), set()
        extra = {}
        is_dpp = any(k in text for k in ("quad_perm", "row_", "wave_sh", "wave_ro"))
        if mn.startswith("v_mfma"):
            kind = "mfma"
            writes = regs_of(clean[0])
            extra["A"] = regs_of(clean[1])
            extra["B"] = regs_of(clean[2])
            extra["C"] = regs_of(clean[3])
            reads = extra["A"] | extra["B"] | extra["C"]
        elif mn.startswith("v_"):
            kind = "valu"
            if mn.startswith("v_permlane"):
                writes = regs_of(clean[0]) | regs_of(clean[1])
                reads = set(writes)
                extra["perm"] = True
            else:
                writes = regs_of(clean[0])
                for c in clean[1:]:
                    reads |= regs_of(c)
                if mn.startswith(("v_fmac", "v_pk_fmac", "v_dot2c")):
                    reads |= writes
                if mn.startswith("v_cndmask") and len(clean) == 3:
                    reads.add("vcc")
                if mn.startswith(("v_readlane", "v_readfirstlane")):
                    extra["readlane"] = True
            extra["trans"] = mn.startswith(TRANS)
            extra["dpp"] = is_dpp
        elif mn.startswith(("buffer_", "global_")):
            kind = "vmem"
            is_lds = text.endswith(" lds") or " lds " in text
            if "store" in mn or "atomic" in mn:
                for c in clean:
                    reads |= regs_of(c)
                extra["wide_store"] = ("x4" in mn or "x3" in mn)
                extra["data"] = regs_of(clean[0])
            elif is_lds:
                for c in clean:
                    reads |= regs_of(c)
                reads.add("m0")
                extra["ldsdma"] = True
            elif mn.startswith(("buffer_inv", "buffer_wbl2")):
                pass
            else:
                writes = regs_of(clean[0])
                for c in clean[1:]:
                    reads |= regs_of(c)
        elif mn.startswith("ds_"):
            kind = "ds"
            if mn.startswith(("ds_write", "ds_add")):
                for c in clean:
                    reads |= regs_of(c)
            else:
                writes = regs_of(clean[0])
                for c in clean[1:]:
                    reads |= regs_of(c)
        elif mn.startswith("s_"):
            kind = "salu"
            if mn == "s_nop":
                n = int(clean[0]) + 1
                self.lines.append("  " + text)
                self.pos += n
                return
            if mn.startswith(("s_cmp", "s_cbranch", "s_branch", "s_waitcnt", "s_barrier", "s_sleep", "s_endpgm", "s_setprio")):
                for c in clean:
                    reads |= regs_of(c)
                if "vcc" in mn:
                    reads.add("vcc")
            else:
                if clean:
                    writes = regs_of(clean[0])
                for c in clean[1:]:
                    reads |= regs_of(c)
        else:
            raise ValueError("unknown instr " + text)

        need = 0
        for (p, k, w, r, e) in self.hist[-40:]:
            dist = self.pos - p - 1
            req = 0
            vw = {x for x in w if x[0] == "v" and x != "vcc"}
            sw = {x for x in w if x[0] == "s" or x == "vcc"}
            if k == "valu":
                if kind == "valu":
                    if extra.get("dpp") and (vw & reads):
                        req = max(req, 2)
                    if extra.get("perm") and (vw & reads):
                        req = max(req, 2)
                    if sw & reads:
                        req = max(req, 2)
                    if e.get("trans") and (vw & reads):
                        req = max(req, 1)
                    if extra.get("readlane") and (vw & reads):
                        req = max(req, 1)
                if kind == "mfma" and (vw & reads):
                    req = max(req, 2)
                if kind == "vmem" and (sw & reads):
                    req = max(req, 5)
                if kind == "salu" and (sw & reads):
                    req = max(req, 2)
                if kind in ("vmem", "ds") and e.get("trans") and (vw & reads):
                    req = max(req, 1)
            if k == "mfma":
                if kind in ("valu", "vmem", "ds") and (w & (reads | writes)):
                    req = max(req, 8)
                if kind == "mfma":
                    if w & (extra["A"] | extra["B"]):
                        req = max(req, 8)
                    if (w & extra["C"]) and w != extra["C"]:
                        req = max(req, 6)
                    if (w & writes) and w != extra["C"]:
                        req = max(req, 8)
                if kind == "valu" and (e["C"] & writes):
                    req = max(req, 3)
            if k == "salu" and "m0" in w and extra.get("ldsdma"):
                req = max(req, 1)
            if k == "vmem" and e.get("wide_store") and (e["data"] & writes):
                req = max(req, 2)
            if req > dist:
                need = max(need, req - dist)
        if need:
            self._nop(need)
        self.lines.append("  " + text)
        self.hist.append((self.pos, kind, writes, reads, extra))
        self.pos += 1

    def vm_issue(self, text, tag):
        self(text)
        self.vm.append(tag)

    def vm_wait(self, tag):
        i = self.vm.index(tag)
        n = len(self.vm) - 1 - i
        self(f"s_waitcnt vmcnt({min(n, 63)})")
        if n <= 63:
            self.vm = self.vm[i + 1:]

    def vm_wait_all(self):
        self("s_waitcnt vmcnt(0)")
        self.vm = []

    def text(self):
        return "\n".join(self.lines) + "\n"
```

```python
import struct, sys
from asmlib import Asm

KN = "recurrent_scan__gqa_block_cached__mixer_token_mlp__decode"


def f2h(x):
    return "0x%08x" % struct.unpack("<I", struct.pack("<f", x))[0]


LOG2E = 1.4426950408889634
SCALE = 128 ** -0.5
GC0 = -2.0 * 0.7978845608028654 * LOG2E
GC1 = GC0 * 0.044715

WO = 0
XN = 73728
H = XN + 4608
QR = H + 2304
QP = QR + 6144
QBF = QP + 8192
OW = QBF + 512
ML = OW + 8192
MR = ML + 128
G9 = MR + 512
OB = G9 + 64
FR = OB + 128
LDS_TOTAL = 114688
assert FR + 8192 <= LDS_TOTAL

QWS = 0
PART = 0x80000
SP = 0x100000
GW = 0x1A0000
F1 = 0x1B0000
F2 = 0x1B1000
WS_BYTES = 0x200000

SPIN_MAX = 400000


def gen(D=24, stage=99):
    a = Asm()
    RB = 16
    SB = RB + 4 * D
    DQ = SB + 64
    QB = DQ + 16
    ACC = QB + 4
    VT = ACC + 32
    NV = VT + 16
    assert NV <= 256

    def v(i):
        return f"v{i}"

    def vr(i, n):
        return f"v[{i}:{i+n-1}]"

    S = lambda i: SB + i

    sK, sV, sX, sWQ, sWO, sW1, sB1, sW2, sB2, sOUT, sDBG, sWS = [f"s[{44+4*i}:{47+4*i}]" for i in range(12)]

    a.raw(f"; @launch grid=(256,1,1) block=(512,1,1) lds={LDS_TOTAL}")
    a.raw('.amdgcn_target "amdgcn-amd-amdhsa--gfx950"')
    a.raw(".text")
    a.raw(f".globl {KN}_kernel")
    a.raw(".p2align 8")
    a.raw(f".type {KN}_kernel,@function")
    a.raw(f"{KN}_kernel:")

    def allreduce(op, x, t):
        a(f"{op}_dpp {v(x)}, {v(x)}, {v(x)} quad_perm:[1,0,3,2] row_mask:0xf bank_mask:0xf")
        a(f"{op}_dpp {v(x)}, {v(x)}, {v(x)} quad_perm:[2,3,0,1] row_mask:0xf bank_mask:0xf")
        a(f"{op}_dpp {v(x)}, {v(x)}, {v(x)} row_half_mirror row_mask:0xf bank_mask:0xf")
        a(f"{op}_dpp {v(x)}, {v(x)}, {v(x)} row_mirror row_mask:0xf bank_mask:0xf")
        xrows(op, x, t)

    def xrows(op, x, t):
        a(f"v_mov_b32 {v(t)}, {v(x)}")
        a(f"v_permlane16_swap_b32 {v(t)}, {v(x)}")
        a(f"{op} {v(x)}, {v(x)}, {v(t)}")
        a(f"v_mov_b32 {v(t)}, {v(x)}")
        a(f"v_permlane32_swap_b32 {v(t)}, {v(x)}")
        a(f"{op} {v(x)}, {v(x)}, {v(t)}")

    def bf16r(x):
        a(f"v_cvt_pk_bf16_f32 {v(x)}, {v(x)}, {v(x)}")
        a(f"v_lshlrev_b32 {v(x)}, 16, {v(x)}")

    def bf16r_list(xs):
        for x in xs:
            a(f"v_cvt_pk_bf16_f32 {v(x)}, {v(x)}, {v(x)}")
        for x in xs:
            a(f"v_lshlrev_b32 {v(x)}, 16, {v(x)}")

    def barrier():
        a("s_waitcnt lgkmcnt(0)")
        a("s_barrier")

    def poll(loadtext, check, tagreg_cnt="s94"):
        L = a.newlabel("L_poll")
        Ld = a.newlabel("L_polldone")
        a(f"s_mov_b32 {tagreg_cnt}, 0")
        a.label(L)
        a(loadtext)
        a("s_waitcnt vmcnt(0)")
        check()
        a(f"s_cbranch_scc1 {Ld}")
        a(f"s_add_u32 {tagreg_cnt}, {tagreg_cnt}, 1")
        a(f"s_cmp_gt_u32 {tagreg_cnt}, {SPIN_MAX}")
        a(f"s_cbranch_scc1 {Ld}")
        a("s_sleep 2")
        a(f"s_branch {L}")
        a.label(Ld)
        a.vm = []

    a("s_cmp_ge_u32 s2, 256")
    a("s_cbranch_scc1 L_end")
    a("s_load_dwordx16 s[16:31], s[0:1], 0")
    a("s_load_dwordx8 s[32:39], s[0:1], 64")
    a("s_load_dwordx2 s[40:41], s[0:1], 96")
    a("v_and_b32 v1, 63, v0")
    a("v_lshrrev_b32 v4, 6, v0")
    a("v_readfirstlane_b32 s3, v4")
    a("s_lshr_b32 s4, s2, 4")
    a("s_bfe_u32 s5, s2, 0x20002")
    a("s_and_b32 s6, s2, 3")
    a("s_lshl_b32 s7, s4, 2")
    a("s_add_u32 s7, s7, s6")
    a("v_and_b32 v4, 3, v1")
    a("v_lshlrev_b32 v2, 4, v4")
    a("v_bfe_u32 v4, v1, 2, 2")
    a("v_lshl_add_u32 v2, v4, 8, v2")
    a("v_lshrrev_b32 v4, 4, v1")
    a("v_lshl_add_u32 v2, v4, 6, v2")
    a("v_lshlrev_b32 v3, 4, v1")
    a("s_mov_b32 s10, 0x05040100")
    a("s_mov_b32 s11, 0x07060302")
    a("s_mov_b32 s12, 0xaaaaaaaa")
    a("s_mov_b32 s13, 0xaaaaaaaa")
    a("s_mov_b32 s14, 0xcccccccc")
    a("s_mov_b32 s15, 0xcccccccc")
    a("s_lshl_b32 s8, s5, 4")
    a("s_add_u32 s8, s8, s4")
    a("s_lshl_b32 s8, s8, 21")
    a("s_lshl_b32 s9, s6, 19")
    a("s_add_u32 s8, s8, s9")
    a("s_lshl_b32 s9, s3, 12")
    a("s_add_u32 s8, s8, s9")
    a("s_waitcnt lgkmcnt(0)")
    srds = [(0, 44, 0), (18, 44, 0x8000000), (20, 48, 0x8000000), (16, 52, 4608), (22, 56, 576 * 4096 * 2),
            (24, 60, 4096 * 576 * 2), (28, 64, 9216), (30, 68, 9216), (32, 72, 9216), (34, 76, 2),
            (36, 80, 4608), (38, 84, 256), (40, 88, WS_BYTES)][1:]
    for (p, d, n) in srds:
        a(f"s_mov_b32 s{d}, s{p}")
        a(f"s_mov_b32 s{d+1}, s{p+1}")
        a(f"s_mov_b32 s{d+2}, {n}")
        a(f"s_mov_b32 s{d+3}, 0x20000")

    def ring_issue(n):
        slot = RB + (n % D) * 4
        k = n & 63
        tile, q4 = k >> 2, k & 3
        if q4 == 0 or n == 0 or True:
            a(f"s_add_u32 s9, s8, {tile*32768}")
        if n < 64:
            a.vm_issue(f"buffer_load_dwordx4 {vr(slot,4)}, v2, {sK}, s9 offen offset:{q4*1024} nt", ("ring", n))
        else:
            a.vm_issue(f"buffer_load_dwordx4 {vr(slot,4)}, v3, {sV}, s9 offen offset:{q4*1024} nt", ("ring", n))

    a("s_cmp_ge_u32 s3, 4")
    a("s_cbranch_scc1 L_role_wq")
    a("s_mul_i32 s9, s3, 1152")
    a("v_lshlrev_b32 v4, 1, v1")
    for i in range(9):
        a(f"buffer_load_ushort {v(S(i))}, v4, {sX}, s9 offen offset:{i*128}")
    a("s_branch L_role_done")
    a.label("L_role_wq")
    a("s_and_b32 s92, s2, 7")
    a("s_sub_u32 s93, s3, 4")
    a("s_lshl_b32 s93, s93, 3")
    a("s_add_u32 s93, s93, s92")
    a("s_cmp_ge_u32 s93, 18")
    a("s_cbranch_scc1 L_role_done")
    a("v_lshrrev_b32 v4, 4, v1")
    a("v_lshlrev_b32 v4, 16, v4")
    a("v_and_b32 v5, 15, v1")
    a("v_lshl_add_u32 v4, v5, 4, v4")
    a("s_lshl_b32 s9, s93, 18")
    a("s_lshr_b32 s95, s2, 3")
    a("s_lshl_b32 s95, s95, 8")
    a("s_add_u32 s9, s9, s95")
    for jj in range(8):
        a(f"buffer_load_dwordx4 {vr(S(4*jj),4)}, v4, {sWQ}, s9 offen")
        if jj < 7:
            a("s_add_u32 s9, s9, 8192")
    a.label("L_role_done")
    a("v_lshlrev_b32 v4, 4, v0")
    a("v_lshlrev_b32 v5, 1, v0")
    a("v_add_u32 v5, 8192, v5")
    a("v_mov_b32 v6, 0")
    a.vm = []
    a.vm_issue(f"buffer_load_dwordx4 {vr(S(48),4)}, v4, {sW1}, 0 offen", "w")
    a.vm_issue(f"buffer_load_dwordx4 {vr(S(52),4)}, v4, {sB1}, 0 offen", "w")
    a.vm_issue(f"buffer_load_dwordx4 {vr(S(56),4)}, v4, {sW2}, 0 offen", "w")
    a.vm_issue(f"buffer_load_ushort {v(S(60))}, v5, {sW1}, 0 offen", "w")
    a.vm_issue(f"buffer_load_ushort {v(S(61))}, v5, {sB1}, 0 offen", "w")
    a.vm_issue(f"buffer_load_ushort {v(S(62))}, v5, {sW2}, 0 offen", "w")
    a.vm_issue(f"buffer_load_ushort {v(S(63))}, v6, {sB2}, 0 offen", "wlast")
    a("s_cmp_eq_u32 s3, 7")
    a("s_cbranch_scc1 L_ring_skip")
    for n in range(D):
        ring_issue(n)
    a.label("L_ring_skip")
    vm_after_ring = list(a.vm)

    a("s_cmp_ge_u32 s3, 4")
    a("s_cbranch_scc1 L_ln_done")
    a(f"s_waitcnt vmcnt({7 + D})")
    X = [S(i) for i in range(9)]
    T = S(9)

    def layernorm(X):
        a(f"v_add_f32 {v(T)}, {v(X[0])}, {v(X[1])}")
        for i in range(2, 9):
            a(f"v_add_f32 {v(T)}, {v(T)}, {v(X[i])}")
        allreduce("v_add_f32", T, T + 1)
        a(f"v_mul_f32 {v(T)}, {f2h(1.0/576)}, {v(T)}")
        a(f"v_sub_f32 {v(T+2)}, {v(X[0])}, {v(T)}")
        a(f"v_mul_f32 {v(T+3)}, {v(T+2)}, {v(T+2)}")
        for i in range(1, 9):
            a(f"v_sub_f32 {v(T+2)}, {v(X[i])}, {v(T)}")
            a(f"v_fmac_f32 {v(T+3)}, {v(T+2)}, {v(T+2)}")
        allreduce("v_add_f32", T + 3, T + 1)
        a(f"v_mul_f32 {v(T+3)}, {f2h(1.0/576)}, {v(T+3)}")
        bf16r(T + 3)
        bf16r(T)
        a(f"v_add_f32 {v(T+3)}, {f2h(1e-5)}, {v(T+3)}")
        bf16r(T + 3)
        a(f"v_sqrt_f32 {v(T+3)}, {v(T+3)}")
        bf16r(T + 3)
        a(f"v_rcp_f32 {v(T+4)}, {v(T+3)}")
        for i in range(9):
            a(f"v_sub_f32 {v(X[i])}, {v(X[i])}, {v(T)}")
        bf16r_list(X)
        for i in range(9):
            a(f"v_mul_f32 {v(T+5)}, {v(X[i])}, {v(T+4)}")
            a(f"v_fma_f32 {v(T+6)}, -{v(T+5)}, {v(T+3)}, {v(X[i])}")
            a(f"v_fma_f32 {v(X[i])}, {v(T+6)}, {v(T+4)}, {v(T+5)}")
        bf16r_list(X)

    for i in range(9):
        a(f"v_lshlrev_b32 {v(X[i])}, 16, {v(X[i])}")
    layernorm(X)
    a("s_mul_i32 s9, s3, 1152")
    a(f"s_add_u32 s9, s9, {XN}")
    a("v_lshl_add_u32 v4, v1, 1, s9")
    for i in range(9):
        a(f"ds_write_b16_d16_hi v4, {v(X[i])} offset:{i*128}")
    a("s_cmp_lg_u32 s3, s5")
    a("s_cbranch_scc1 L_ln_done")
    layernorm(X)
    a(f"v_mov_b32 v5, {H}")
    a("v_lshl_add_u32 v4, v1, 2, v5")
    for i in range(9):
        a(f"ds_write_b32 v4, {v(X[i])} offset:{i*256}")
    a.label("L_ln_done")
    barrier()

    a("s_cmp_lt_u32 s3, 4")
    a("s_cbranch_scc1 L_qp_done")
    a("s_cmp_eq_u32 s3, 7")
    a("s_cbranch_scc1 L_qp_done")
    for i in range(8):
        a(f"v_mov_b32 {v(VT+i)}, 0")
    a("s_cmp_ge_u32 s93, 18")
    a("s_cbranch_scc1 L_qp_write")
    a("v_and_b32 v4, 3, v1")
    a("v_mul_u32_u24 v4, 1152, v4")
    a("v_lshrrev_b32 v5, 4, v1")
    a("v_lshl_add_u32 v4, v5, 4, v4")
    a("s_lshl_b32 s9, s93, 6")
    a(f"s_add_u32 s9, s9, {XN}")
    a("v_add_u32 v4, s9, v4")
    a(f"ds_read_b128 {vr(DQ,4)}, v4")
    a(f"s_waitcnt vmcnt({7 + D}) lgkmcnt(0)")
    for w4 in range(4):
        t = DQ + 4 + (w4 & 1) * 0
        for pr in range(4):
            a(f"v_perm_b32 {v(DQ+4+pr)}, {v(S(4*(2*pr+1)+w4))}, {v(S(4*(2*pr)+w4))}, s10")
        for pr in range(4):
            a(f"v_perm_b32 {v(DQ+8+pr)}, {v(S(4*(2*pr+1)+w4))}, {v(S(4*(2*pr)+w4))}, s11")
        a(f"v_mfma_f32_16x16x32_bf16 {vr(ACC+4*(2*w4),4)}, {vr(DQ,4)}, {vr(DQ+4,4)}, 0")
        a(f"v_mfma_f32_16x16x32_bf16 {vr(ACC+4*(2*w4+1),4)}, {vr(DQ,4)}, {vr(DQ+8,4)}, 0")
    a("s_mov_b32 s96, 0xffff0000")
    a("s_mov_b32 s97, 0xffff0000")
    a("s_mov_b32 s98, 0")
    a("s_mov_b32 s99, 0xffffffff")
    for e in range(8):
        d = ACC + 4 * e
        a(f"v_cndmask_b32 {v(d)}, {v(d)}, {v(d+1)}, s[96:97]")
        a(f"v_cndmask_b32 {v(d+2)}, {v(d+2)}, {v(d+3)}, s[96:97]")
        a(f"v_cndmask_b32 {v(VT+e)}, {v(d)}, {v(d+2)}, s[98:99]")
    a.label("L_qp_write")
    a("s_sub_u32 s9, s3, 4")
    a("s_lshl_b32 s9, s9, 11")
    a(f"s_add_u32 s9, s9, {QR}")
    a("v_lshl_add_u32 v4, v1, 5, s9")
    a(f"ds_write_b128 v4, {vr(VT,4)}")
    a(f"ds_write_b128 v4, {vr(VT+4,4)} offset:16")
    a.label("L_qp_done")
    barrier()

    a("s_cmp_lg_u32 s3, 7")
    a("s_cbranch_scc1 L_pub_done")
    a(f"v_mov_b32 v5, {QR}")
    a("v_lshl_add_u32 v4, v1, 5, v5")
    for k in range(3):
        a(f"ds_read_b128 {vr(ACC+8*k,4)}, v4 offset:{k*2048}")
        a(f"ds_read_b128 {vr(ACC+8*k+4,4)}, v4 offset:{k*2048+16}")
    a("s_waitcnt lgkmcnt(0)")
    for e in range(8):
        a(f"v_add_f32 {v(ACC+e)}, {v(ACC+e)}, {v(ACC+8+e)}")
    for e in range(8):
        a(f"v_add_f32 {v(ACC+e)}, {v(ACC+e)}, {v(ACC+16+e)}")
    a("s_lshl_b32 s9, s2, 11")
    a("v_lshlrev_b32 v4, 5, v1")
    a(f"buffer_store_dwordx4 {vr(ACC,4)}, v4, {sWS}, s9 offen sc0 sc1")
    a(f"buffer_store_dwordx4 {vr(ACC+4,4)}, v4, {sWS}, s9 offen offset:16 sc0 sc1")
    a("s_mov_b64 exec, 1")
    a("v_mov_b32 v5, 0")
    a("s_lshl_b32 s9, s2, 2")
    a(f"s_add_u32 s9, s9, {F1}")
    a(f"buffer_store_dword v5, v5, {sWS}, s9 offen sc0 sc1")
    a("s_lshl_b32 s9, s5, 6")
    a("s_add_u32 s9, s9, s7")
    a("s_lshl_b32 s9, s9, 2")
    a(f"s_add_u32 s9, s9, {F2}")
    a(f"buffer_store_dword v5, v5, {sWS}, s9 offen sc0 sc1")
    a("s_waitcnt vmcnt(0)")
    a("v_mov_b32 v6, 1")
    a(f"buffer_store_byte v6, v5, {sDBG}, s2 offen sc0 sc1")
    a("s_mov_b64 exec, -1")
    save = a.vm
    a.vm = []
    for n in range(D):
        ring_issue(n)
    a.label("L_pub_done")
    a.vm = [("ring", n) for n in range(D)]

    a(f"s_waitcnt vmcnt({D})")
    W1F, B1F, W2F, HH, MA = S(0), S(9), S(18), S(27), S(36)
    for (src, dst, last) in ((S(48), W1F, S(60)), (S(52), B1F, S(61)), (S(56), W2F, S(62))):
        for i in range(4):
            a(f"v_lshlrev_b32 {v(dst+2*i)}, 16, {v(src+i)}")
            a(f"v_and_b32 {v(dst+2*i+1)}, 0xffff0000, {v(src+i)}")
        a(f"v_lshlrev_b32 {v(dst+8)}, 16, {v(last)}")
    a("s_mul_i32 s9, s7, 36")
    a(f"s_add_u32 s9, s9, {H}")
    a("v_mov_b32 v4, s9")
    for dd in range(9):
        a(f"ds_read_b32 {v(HH+dd)}, v4 offset:{dd*4}")
    a(f"v_mov_b32 v5, {f2h(GC1)}")
    for dd in range(9):
        a(f"v_mov_b32 {v(MA+dd)}, 0")
    a("s_waitcnt lgkmcnt(0)")
    U = DQ
    E = DQ + 10
    for dd in range(9):
        us = [U + i for i in range(9)]
        es = [E + i for i in range(9)]

        def rnd(regs):
            for i in range(0, 8, 2):
                a(f"v_cvt_pk_bf16_f32 {v(regs[i])}, {v(regs[i])}, {v(regs[i+1])}")
            a(f"v_cvt_pk_bf16_f32 {v(regs[8])}, {v(regs[8])}, {v(regs[8])}")
            for i in range(0, 8, 2):
                a(f"v_and_b32 {v(regs[i+1])}, 0xffff0000, {v(regs[i])}")
                a(f"v_lshlrev_b32 {v(regs[i])}, 16, {v(regs[i])}")
            a(f"v_lshlrev_b32 {v(regs[8])}, 16, {v(regs[8])}")

        for i in range(9):
            a(f"v_mul_f32 {v(us[i])}, {v(HH+dd)}, {v(W1F+i)}")
        rnd(us)
        for i in range(9):
            a(f"v_add_f32 {v(us[i])}, {v(us[i])}, {v(B1F+i)}")
        rnd(us)
        for i in range(9):
            a(f"v_mul_f32 {v(es[i])}, {v(us[i])}, {v(us[i])}")
        for i in range(9):
            a(f"v_fmaak_f32 {v(es[i])}, v5, {v(es[i])}, {f2h(GC0)}")
        for i in range(9):
            a(f"v_mul_f32 {v(es[i])}, {v(es[i])}, {v(us[i])}")
        for i in range(9):
            a(f"v_exp_f32 {v(es[i])}, {v(es[i])}")
        for i in range(9):
            a(f"v_add_f32 {v(es[i])}, 1.0, {v(es[i])}")
        for i in range(9):
            a(f"v_rcp_f32 {v(es[i])}, {v(es[i])}")
        for i in range(9):
            a(f"v_mul_f32 {v(us[i])}, {v(us[i])}, {v(es[i])}")
        rnd(us)
        for i in range(9):
            a(f"v_fmac_f32 {v(MA+dd)}, {v(us[i])}, {v(W2F+i)}")
    for dd in range(9):
        allreduce("v_add_f32", MA + dd, U)
    a("s_lshl_b32 s9, s3, 6")
    a(f"s_add_u32 s9, s9, {MR}")
    a("v_mov_b32 v4, s9")
    a("s_mov_b64 exec, 1")
    for dd in range(9):
        a(f"ds_write_b32 v4, {v(MA+dd)} offset:{dd*4}")
    a("s_mov_b64 exec, -1")
    barrier()
    a("s_cmp_lg_u32 s3, 0")
    a("s_cbranch_scc1 L_g_done")
    a("v_and_b32 v4, 15, v1")
    a(f"v_mov_b32 v5, {MR}")
    a("v_lshl_add_u32 v4, v4, 2, v5")
    for w in range(8):
        a(f"ds_read_b32 {v(U+w)}, v4 offset:{w*64}")
    a("s_waitcnt lgkmcnt(0)")
    for w in range(1, 8):
        a(f"v_add_f32 {v(U)}, {v(U)}, {v(U+w)}")
    bf16r(U)
    a(f"v_lshlrev_b32 {v(U+1)}, 16, {v(S(63))}")
    a(f"v_add_f32 {v(U)}, {v(U)}, {v(U+1)}")
    bf16r(U)
    a(f"v_mul_f32 {v(U+1)}, {f2h(-LOG2E)}, {v(U)}")
    a(f"v_exp_f32 {v(U+1)}, {v(U+1)}")
    a(f"v_add_f32 {v(U+1)}, 1.0, {v(U+1)}")
    a(f"v_rcp_f32 {v(U+2)}, {v(U+1)}")
    a(f"v_mul_f32 {v(U+3)}, {v(U)}, {v(U+2)}")
    a(f"v_fma_f32 {v(U+4)}, -{v(U+3)}, {v(U+1)}, {v(U)}")
    a(f"v_fma_f32 {v(U)}, {v(U+4)}, {v(U+2)}, {v(U+3)}")
    bf16r(U)
    a("v_and_b32 v4, 15, v1")
    a(f"v_mov_b32 v5, {G9}")
    a("v_lshl_add_u32 v4, v4, 2, v5")
    a(f"ds_write_b32 v4, {v(U)}")
    a.label("L_g_done")

    a("s_lshl_b32 s9, s4, 4")
    a("v_mov_b32 v4, 0")

    def chk_q():
        a(f"v_and_b32 {v(U)}, {v(U)}, {v(U+1)}")
        a(f"v_and_b32 {v(U+2)}, {v(U+2)}, {v(U+3)}")
        a(f"v_and_b32 {v(U)}, {v(U)}, {v(U+2)}")
        a(f"v_readfirstlane_b32 s95, {v(U)}")
        a("s_cmp_eq_u32 s95, 0x01010101")

    poll(f"buffer_load_dwordx4 {vr(U,4)}, v4, {sDBG}, s9 offen sc0 sc1", chk_q)
    a("v_lshrrev_b32 v4, 5, v1")
    a("v_lshlrev_b32 v4, 14, v4")
    a("v_and_b32 v5, 31, v1")
    a("v_lshl_add_u32 v4, v5, 4, v4")
    a("s_lshl_b32 s9, s4, 15")
    a("s_lshl_b32 s95, s3, 11")
    a("s_add_u32 s9, s9, s95")
    a("s_lshl_b32 s95, s5, 9")
    a("s_add_u32 s9, s9, s95")
    a(f"buffer_load_dwordx4 {vr(U,4)}, v4, {sWS}, s9 offen sc0 sc1")
    a("s_lshl_b32 s9, s3, 10")
    a(f"s_add_u32 s9, s9, {QP}")
    a("v_lshl_add_u32 v4, v1, 4, s9")
    a("s_waitcnt vmcnt(0)")
    a(f"ds_write_b128 v4, {vr(U,4)}")
    barrier()
    a("s_cmp_ge_u32 s3, 4")
    a("s_cbranch_scc1 L_qsum_done")
    a(f"v_mov_b32 v5, {QP}")
    a("v_lshl_add_u32 v4, v0, 2, v5")
    for w in range(8):
        a(f"ds_read_b32 {v(U+w)}, v4 offset:{w*1024}")
    a("s_waitcnt lgkmcnt(0)")
    for w in range(1, 8):
        a(f"v_add_f32 {v(U)}, {v(U)}, {v(U+w)}")
    a(f"v_cvt_pk_bf16_f32 {v(U)}, {v(U)}, {v(U)}")
    a(f"v_mov_b32 v5, {QBF}")
    a("v_lshl_add_u32 v4, v0, 1, v5")
    a(f"ds_write_b16 v4, {v(U)}")
    a.label("L_qsum_done")
    barrier()
    a("v_bfe_u32 v4, v1, 2, 1")
    a("v_lshlrev_b32 v4, 8, v4")
    a("v_and_b32 v5, 3, v1")
    a("v_lshl_add_u32 v4, v5, 4, v4")
    a("v_lshrrev_b32 v5, 4, v1")
    a("v_lshl_add_u32 v4, v5, 6, v4")
    a(f"v_add_u32 v4, {QBF}, v4")
    a(f"ds_read_b128 {vr(QB,4)}, v4")
    a("s_waitcnt lgkmcnt(0)")

    a.vm = []
    landed = set(range(D))

    def extract(t):
        d = DQ + 4 * (t % 4)
        a(f"v_cndmask_b32 {v(d)}, {v(d)}, {v(d+1)}, s[12:13]")
        a(f"v_cndmask_b32 {v(d+2)}, {v(d+2)}, {v(d+3)}, s[12:13]")
        a(f"v_cndmask_b32 {v(d)}, {v(d)}, {v(d+2)}, s[14:15]")
        a(f"v_add_f32_dpp {v(d)}, {v(d)}, {v(d)} quad_perm:[1,0,3,2] row_mask:0xf bank_mask:0xf")
        a(f"v_add_f32_dpp {v(S(t))}, {v(d)}, {v(d)} quad_perm:[2,3,0,1] row_mask:0xf bank_mask:0xf")

    for t in range(64):
        if t not in landed:
            a.vm_wait(("ring", t))
        slot = RB + (t % D) * 4
        a(f"v_mfma_f32_16x16x32_bf16 {vr(DQ+4*(t%4),4)}, {vr(slot,4)}, {vr(QB,4)}, 0")
        if t + D < 128:
            ring_issue(t + D)
        if t >= 2:
            extract(t - 2)
    extract(62)
    extract(63)
    a("s_lshl_b32 s9, s4, 2")
    a("s_add_u32 s9, s9, s6")
    a("s_mul_i32 s9, s9, 73728")
    a("s_mul_i32 s95, s3, 9216")
    a("s_add_u32 s9, s9, s95")
    for c in range(9):
        a(f"s_add_u32 s94, s95, {WO + c*1024}")
        a("s_mov_b32 m0, s94")
        a.vm_issue(f"buffer_load_dwordx4 v3, {sWO}, s9 offen lds", ("wo", c))
        if c < 8:
            a("s_add_u32 s9, s9, 1024")

    a(f"v_mov_b32 v4, {f2h(SCALE)}")
    for blk in range(0, 64, 16):
        idx = list(range(blk, blk + 16))
        for rep in range(2):
            for i in idx[::2]:
                a(f"v_cvt_pk_bf16_f32 {v(S(i))}, {v(S(i))}, {v(S(i+1))}")
            for i in idx[::2]:
                a(f"v_and_b32 {v(S(i+1))}, 0xffff0000, {v(S(i))}")
                a(f"v_lshlrev_b32 {v(S(i))}, 16, {v(S(i))}")
            if rep == 0:
                for i in idx:
                    a(f"v_mul_f32 {v(S(i))}, {v(S(i))}, v4")
    MX, LS, TM = 6, 7, 8
    a(f"v_max3_f32 v6, {v(S(0))}, {v(S(1))}, {v(S(2))}")
    a(f"v_max3_f32 v8, {v(S(3))}, {v(S(4))}, {v(S(5))}")
    for i in range(6, 62, 4):
        a(f"v_max3_f32 v6, v6, {v(S(i))}, {v(S(i+1))}")
        a(f"v_max3_f32 v8, v8, {v(S(i+2))}, {v(S(i+3))}")
    a(f"v_max3_f32 v6, v6, {v(S(62))}, {v(S(63))}")
    a("v_max_f32 v6, v6, v8")
    xrows("v_max_f32", 6, 8)
    a(f"v_mul_f32 v9, {f2h(-LOG2E)}, v6")
    a(f"v_mov_b32 v4, {f2h(LOG2E)}")
    for blk in range(0, 64, 8):
        for i in range(blk, blk + 8):
            a(f"v_fma_f32 {v(S(i))}, {v(S(i))}, v4, v9")
        for i in range(blk, blk + 8):
            a(f"v_exp_f32 {v(S(i))}, {v(S(i))}")
    a(f"v_add_f32 v7, {v(S(0))}, {v(S(1))}")
    a(f"v_add_f32 v8, {v(S(2))}, {v(S(3))}")
    for i in range(4, 64, 2):
        a(f"v_add_f32 v7, v7, {v(S(i))}")
        a(f"v_add_f32 v8, v8, {v(S(i+1))}")
    a("v_add_f32 v7, v7, v8")
    xrows("v_add_f32", 7, 8)
    for T in range(8):
        for pr in range(4):
            a(f"v_cvt_pk_bf16_f32 {v(S(8*T+pr))}, {v(S(8*T+2*pr))}, {v(S(8*T+2*pr+1))}")

    for T in range(8):
        n0 = 64 + 8 * T
        last = n0 + 7
        if last not in landed:
            a.vm_wait(("ring", last))
        sl = [RB + ((n0 + jj) % D) * 4 for jj in range(8)]
        for w4 in range(4):
            t0 = VT + (w4 & 1) * 8
            for pr in range(4):
                a(f"v_perm_b32 {v(t0+pr)}, {v(sl[2*pr+1]+w4)}, {v(sl[2*pr]+w4)}, s10")
            for pr in range(4):
                a(f"v_perm_b32 {v(t0+4+pr)}, {v(sl[2*pr+1]+w4)}, {v(sl[2*pr]+w4)}, s11")
            if w4 == 3:
                for jj in range(8):
                    if n0 + jj + D < 128:
                        ring_issue(n0 + jj + D)
            c0 = "0" if T == 0 else vr(ACC + 4 * (2 * w4), 4)
            c1 = "0" if T == 0 else vr(ACC + 4 * (2 * w4 + 1), 4)
            a(f"v_mfma_f32_16x16x32_bf16 {vr(ACC+4*(2*w4),4)}, {vr(S(8*T),4)}, {vr(t0,4)}, {c0}")
            a(f"v_mfma_f32_16x16x32_bf16 {vr(ACC+4*(2*w4+1),4)}, {vr(S(8*T),4)}, {vr(t0+4,4)}, {c1}")

    a("v_bfe_u32 v4, v1, 4, 1")
    a("v_lshlrev_b32 v4, 9, v4")
    a("v_and_b32 v5, 15, v1")
    a("v_lshl_add_u32 v4, v5, 5, v4")
    a("s_lshl_b32 s9, s3, 10")
    a(f"s_add_u32 s9, s9, {OW}")
    a("v_add_u32 v4, s9, v4")
    for e in range(8):
        a(f"ds_write_b32 v4, {v(ACC+4*e)} offset:{e*4}")
    a("v_bfe_u32 v4, v1, 2, 1")
    a("s_lshl_b32 s9, s3, 4")
    a(f"s_add_u32 s9, s9, {ML}")
    a("v_lshl_add_u32 v4, v4, 3, s9")
    a("ds_write_b64 v4, v[6:7]")
    a("s_waitcnt vmcnt(0)")
    a.vm = []
    barrier()
    a("s_cmp_ge_u32 s3, 4")
    a("s_cbranch_scc1 L_t1_done")
    a("s_lshr_b32 s9, s3, 1")
    a("s_lshl_b32 s95, s9, 3")
    a(f"s_add_u32 s95, s95, {ML}")
    a("v_mov_b32 v4, s95")
    MLr = S(0)
    Or = S(16)
    for w in range(8):
        a(f"ds_read_b64 {vr(MLr+2*w,2)}, v4 offset:{w*16}")
    a(f"v_mov_b32 v5, {OW}")
    a("v_lshl_add_u32 v4, v0, 2, v5")
    for w in range(8):
        a(f"ds_read_b32 {v(Or+w)}, v4 offset:{w*1024}")
    a("s_waitcnt lgkmcnt(0)")

    def combine(n, MLr, Or, F, outM, outL, outO):
        a(f"v_max_f32 {v(outM)}, {v(MLr)}, {v(MLr+2)}")
        for i in range(2, n):
            a(f"v_max_f32 {v(outM)}, {v(outM)}, {v(MLr+2*i)}")
        for i in range(n):
            a(f"v_sub_f32 {v(F+i)}, {v(MLr+2*i)}, {v(outM)}")
        for i in range(n):
            a(f"v_mul_f32 {v(F+i)}, {f2h(LOG2E)}, {v(F+i)}")
        for i in range(n):
            a(f"v_exp_f32 {v(F+i)}, {v(F+i)}")
        a(f"v_mul_f32 {v(outL)}, {v(F)}, {v(MLr+1)}")
        a(f"v_mul_f32 {v(outO)}, {v(F)}, {v(Or)}")
        for i in range(1, n):
            a(f"v_fmac_f32 {v(outL)}, {v(F+i)}, {v(MLr+2*i+1)}")
            a(f"v_fmac_f32 {v(outO)}, {v(F+i)}, {v(Or+i)}")

    combine(8, MLr, Or, S(24), 6, 7, 8)
    a("s_lshl_b32 s95, s2, 11")
    a(f"s_add_u32 s95, s95, {PART}")
    a("v_lshlrev_b32 v4, 2, v0")
    a(f"buffer_store_dword v8, v4, {sWS}, s95 offen sc0 sc1")
    a("s_lshl_b32 s9, s9, 3")
    a("v_mov_b32 v4, s9")
    a("s_mov_b64 exec, 1")
    a(f"buffer_store_dwordx2 v[6:7], v4, {sWS}, s95 offen offset:1024 sc0 sc1")
    a("s_mov_b64 exec, -1")
    a("s_waitcnt vmcnt(0)")
    a.label("L_t1_done")
    barrier()
    a("s_cmp_lg_u32 s3, 0")
    a("s_cbranch_scc1 L_t3_done")
    a("s_lshl_b32 s9, s2, 2")
    a(f"s_add_u32 s9, s9, {F1}")
    a("v_mov_b32 v4, 0")
    a("v_mov_b32 v5, 1")
    a("s_mov_b64 exec, 1")
    a(f"buffer_store_dword v5, v4, {sWS}, s9 offen sc0 sc1")
    a("s_mov_b64 exec, -1")
    a("s_and_b32 s9, s2, 0xfc")
    a("s_lshl_b32 s9, s9, 2")
    a(f"s_add_u32 s9, s9, {F1}")

    def chk_f1():
        a(f"v_and_b32 {v(U)}, {v(U)}, {v(U+1)}")
        a(f"v_and_b32 {v(U+2)}, {v(U+2)}, {v(U+3)}")
        a(f"v_and_b32 {v(U)}, {v(U)}, {v(U+2)}")
        a(f"v_readfirstlane_b32 s95, {v(U)}")
        a("s_cmp_eq_u32 s95, 1")

    poll(f"buffer_load_dwordx4 {vr(U,4)}, v4, {sWS}, s9 offen sc0 sc1", chk_f1)
    a("s_and_b32 s9, s2, 0xfc")
    a("s_lshl_b32 s9, s9, 11")
    a(f"s_add_u32 s9, s9, {PART}")
    a("s_lshl_b32 s95, s6, 8")
    a("v_lshl_add_u32 v4, v1, 2, s95")
    a("s_lshr_b32 s95, s6, 1")
    a("s_lshl_b32 s95, s95, 3")
    a("s_add_u32 s95, s95, 1024")
    a("v_mov_b32 v5, s95")
    for s in range(4):
        a(f"buffer_load_dword {v(Or+s)}, v4, {sWS}, s9 offen offset:{s*2048 if s<2 else 0} sc0 sc1" if s < 2 else
          f"buffer_load_dword {v(Or+s)}, v4, {sWS}, s94 offen offset:{(s-2)*2048} sc0 sc1")
        a(f"buffer_load_dwordx2 {vr(MLr+2*s,2)}, v5, {sWS}, s9 offen offset:{s*2048} sc0 sc1" if s < 2 else
          f"buffer_load_dwordx2 {vr(MLr+2*s,2)}, v5, {sWS}, s94 offen offset:{(s-2)*2048} sc0 sc1")
        if s == 1:
            a("s_add_u32 s94, s9, 4096")
    a("s_waitcnt vmcnt(0)")
    combine(4, MLr, Or, S(24), 6, 7, 8)
    a("v_rcp_f32 v9, v7")
    a("v_mul_f32 v10, v8, v9")
    a("v_fma_f32 v11, -v10, v7, v8")
    a("v_fma_f32 v8, v11, v9, v10")
    a("v_cvt_pk_bf16_f32 v8, v8, v8")
    a(f"v_mov_b32 v5, {OB}")
    a("v_lshl_add_u32 v4, v1, 1, v5")
    a("ds_write_b16 v4, v8")
    a.label("L_t3_done")
    barrier()

    a("v_lshrrev_b32 v4, 4, v1")
    a(f"v_mov_b32 v5, {OB}")
    a("v_lshl_add_u32 v5, v4, 4, v5")
    a(f"ds_read_b128 {vr(DQ,4)}, v5")
    a(f"ds_read_b128 {vr(DQ+4,4)}, v5 offset:64")
    a("v_bfe_u32 v5, v1, 2, 2")
    a("v_lshl_add_u32 v5, v4, 3, v5")
    a("v_mul_u32_u24 v5, 1152, v5")
    a("v_and_b32 v6, 3, v1")
    a("v_lshl_add_u32 v5, v6, 3, v5")
    a("s_lshl_b32 s9, s3, 5")
    a("v_add_u32 v5, s9, v5")
    a(f"v_add_u32 v6, {32*1152}, v5")
    a("s_lshl_b32 s95, s5, 6")
    a("s_add_u32 s95, s95, s7")
    a("s_mul_i32 s95, s95, 2304")
    a(f"s_add_u32 s95, s95, {SP}")
    a("v_and_b32 v7, 15, v1")
    a("v_lshlrev_b32 v7, 2, v7")
    a("s_lshl_b32 s9, s3, 6")
    a("v_add_u32 v7, s9, v7")
    for i in range(5):
        if i == 4:
            a("s_cmp_ge_u32 s3, 4")
            a("s_cbranch_scc1 L_proj_done")
        b0 = S(8 * i)
        a(f"ds_read_b64_tr_b16 {vr(b0,2)}, v5 offset:{i*256}")
        a(f"ds_read_b64_tr_b16 {vr(b0+2,2)}, v5 offset:{i*256 + 4*1152}")
        a(f"ds_read_b64_tr_b16 {vr(b0+4,2)}, v6 offset:{i*256}")
        a(f"ds_read_b64_tr_b16 {vr(b0+6,2)}, v6 offset:{i*256 + 4*1152}")
        a("s_waitcnt lgkmcnt(0)")
        a(f"v_mfma_f32_16x16x32_bf16 {vr(ACC+4*i,4)}, {vr(DQ,4)}, {vr(b0,4)}, 0")
        a(f"v_mfma_f32_16x16x32_bf16 {vr(ACC+4*i,4)}, {vr(DQ+4,4)}, {vr(b0+4,4)}, {vr(ACC+4*i,4)}")
        a("s_mov_b64 exec, 0xffff")
        a(f"buffer_store_dword {v(ACC+4*i)}, v7, {sWS}, s95 offen offset:{i*512} sc0 sc1")
        a("s_mov_b64 exec, -1")
    a.label("L_proj_done")
    a("s_cmp_lg_u32 s3, 0")
    a("s_cbranch_scc1 L_gst_done")
    a(f"v_mov_b32 v5, {G9}")
    a("v_lshl_add_u32 v4, v1, 2, v5")
    a("s_mov_b64 exec, 0x1ff")
    a("ds_read_b32 v8, v4")
    a("s_mul_i32 s9, s5, 576")
    a("s_mul_i32 s95, s7, 9")
    a("s_add_u32 s9, s9, s95")
    a("s_lshl_b32 s9, s9, 2")
    a(f"s_add_u32 s9, s9, {GW}")
    a("v_lshlrev_b32 v4, 2, v1")
    a("s_waitcnt lgkmcnt(0)")
    a(f"buffer_store_dword v8, v4, {sWS}, s9 offen sc0 sc1")
    a("s_mov_b64 exec, -1")
    a.label("L_gst_done")
    a("s_waitcnt vmcnt(0)")
    barrier()
    a("s_cmp_lg_u32 s3, 0")
    a("s_cbranch_scc1 L_f2_done")
    a("s_lshl_b32 s9, s5, 6")
    a("s_add_u32 s9, s9, s7")
    a("s_lshl_b32 s9, s9, 2")
    a(f"s_add_u32 s9, s9, {F2}")
    a("v_mov_b32 v4, 0")
    a("v_mov_b32 v5, 1")
    a("s_mov_b64 exec, 1")
    a(f"buffer_store_dword v5, v4, {sWS}, s9 offen sc0 sc1")
    a("s_mov_b64 exec, -1")
    a.label("L_f2_done")

    a("s_cmp_ge_u32 s7, 18")
    a("s_cbranch_scc1 L_end")
    a("s_cmp_lg_u32 s3, 0")
    a("s_cbranch_scc1 L_red_wait_done")
    a("v_lshlrev_b32 v4, 2, v1")
    a("v_and_b32 v5, 3, v1")
    a("v_cmp_eq_u32 s[96:97], s5, v5")

    def chk_dbg():
        a(f"v_cmp_eq_u32 vcc, 0x01010101, {v(U)}")
        a("s_and_b64 s[98:99], vcc, s[96:97]")
        a("s_cmp_eq_u64 s[98:99], s[96:97]")

    poll(f"buffer_load_dword {v(U)}, v4, {sDBG}, 0 offen sc0 sc1", chk_dbg)
    a("s_lshl_b32 s9, s5, 8")
    a(f"s_add_u32 s9, s9, {F2}")

    def chk_f2():
        a(f"v_cmp_eq_u32 vcc, 1, {v(U)}")
        a("s_cmp_eq_u64 vcc, -1")

    poll(f"buffer_load_dword {v(U)}, v4, {sWS}, s9 offen sc0 sc1", chk_f2)
    a.label("L_red_wait_done")
    barrier()
    a("v_lshrrev_b32 v4, 3, v0")
    a("v_mul_u32_u24 v4, 2304, v4")
    a("v_and_b32 v5, 7, v0")
    a("v_lshl_add_u32 v4, v5, 4, v4")
    a("s_mul_i32 s9, s5, 147456")
    a("s_lshl_b32 s95, s7, 7")
    a("s_add_u32 s9, s9, s95")
    a(f"s_add_u32 s9, s9, {SP}")
    a(f"buffer_load_dwordx4 {vr(U,4)}, v4, {sWS}, s9 offen sc0 sc1")
    a("v_and_b32 v6, 31, v1")
    a("s_mul_i32 s9, s5, 576")
    a("s_lshl_b32 s95, s7, 5")
    a("s_add_u32 s9, s9, s95")
    a("s_lshl_b32 s95, s9, 2")
    a(f"s_add_u32 s95, s95, {GW}")
    a("v_lshlrev_b32 v7, 2, v6")
    a(f"buffer_load_dword v10, v7, {sWS}, s95 offen sc0 sc1")
    a("s_lshl_b32 s9, s9, 1")
    a("v_lshlrev_b32 v7, 1, v6")
    a(f"buffer_load_ushort v11, v7, {sX}, s9 offen")
    a(f"v_mov_b32 v5, {FR}")
    a("v_lshl_add_u32 v4, v0, 4, v5")
    a("s_waitcnt vmcnt(2)")
    a(f"ds_write_b128 v4, {vr(U,4)}")
    barrier()
    a("s_cmp_lg_u32 s3, 0")
    a("s_cbranch_scc1 L_end")
    a("v_lshrrev_b32 v4, 5, v1")
    a("v_lshlrev_b32 v4, 12, v4")
    a("v_lshl_add_u32 v4, v6, 2, v4")
    a(f"v_add_u32 v4, {FR}, v4")
    for i in range(32):
        a(f"ds_read_b32 {v(S(i))}, v4 offset:{i*128}")
    a("s_waitcnt lgkmcnt(0)")
    for st in (16, 8, 4, 2, 1):
        for i in range(st):
            a(f"v_add_f32 {v(S(i))}, {v(S(i))}, {v(S(i+st))}")
    a(f"v_mov_b32 v8, {v(S(0))}")
    a(f"v_permlane32_swap_b32 v8, {v(S(0))}")
    a(f"v_add_f32 v8, v8, {v(S(0))}")
    bf16r(8)
    a("s_waitcnt vmcnt(0)")
    a("v_mul_f32 v8, v8, v10")
    bf16r(8)
    a("v_lshlrev_b32 v11, 16, v11")
    a("v_add_f32 v8, v8, v11")
    a("v_cvt_pk_bf16_f32 v8, v8, v8")
    a("s_mov_b32 exec_hi, 0")
    a(f"buffer_store_short v8, v7, {sOUT}, s9 offen")
    a.raw("L_end:")
    a("s_endpgm")

    a.raw('.section .rodata,"a"')
    a.raw(".p2align 6")
    a.raw(f".amdhsa_kernel {KN}_kernel")
    a.raw(f"  .amdhsa_next_free_vgpr {NV}")
    a.raw("  .amdhsa_next_free_sgpr 102")
    a.raw(f"  .amdhsa_accum_offset {(NV+3)//4*4}")
    a.raw("  .amdhsa_group_segment_fixed_size 0")
    a.raw("  .amdhsa_kernarg_size 104")
    a.raw("  .amdhsa_user_sgpr_count 2")
    a.raw("  .amdhsa_user_sgpr_kernarg_segment_ptr 1")
    a.raw("  .amdhsa_system_sgpr_workgroup_id_x 1")
    a.raw(".end_amdhsa_kernel")
    return a.text()


if __name__ == "__main__":
    D = int(sys.argv[2]) if len(sys.argv) > 2 else 24
    out = sys.argv[1] if len(sys.argv) > 1 else "k.s"
    open(out, "w").write(gen(D))
    print("wrote", out)
```
